```python
import torch

def _softmax(x, axis=-1):
    return torch.softmax(x, dim=axis)
def _gelu(x):
    return torch.nn.functional.gelu(x, approximate="tanh")
def _silu(x):
    return torch.nn.functional.silu(x)
def _sigmoid(x):
    return torch.sigmoid(x)
def _layernorm(x, axis=-1, eps=1e-5):
    m = x.mean(dim=axis, keepdim=True)
    v = x.var(dim=axis, keepdim=True, unbiased=False)
    return (x - m) / torch.sqrt(v + eps)
def _scatter_add(tgt, idx, src, axis=0):
    return tgt.clone().index_add_(axis, idx, src)
def _segment_sum(src, seg, n):
    out = torch.zeros((n,) + src.shape[1:], dtype=src.dtype)
    return out.index_add_(0, seg, src)
def _pad(x, pw):
    flat = tuple(v for pair in reversed(pw) for v in pair)
    return torch.nn.functional.pad(x, flat)

kernel_name = 'sequential_preLN__softmax_full_mha__dense_activation_relu__prompt'

def setup_inputs():

    _w = (lambda a: (lambda t: t.to(torch.bfloat16) if t.is_floating_point() else t)(torch.as_tensor(a)))
    def _A_setup():
        B, S, D = 1, 2048, 448
        return {
            "x": _w((lambda *s: torch.randn(*s, dtype=torch.bfloat16) * 0.05)(B, S, D)),
            "wqkv": _w((lambda *s: torch.randn(*s, dtype=torch.bfloat16) * 0.05)(D, 3 * D)),
            "wo": _w((lambda *s: torch.randn(*s, dtype=torch.bfloat16) * 0.05)(D, D)),
        }
    _A_in = _A_setup()

    def _B_setup():
        B, S, D, Dff = 1, 2048, 448, 1792
        return {
            "x": _w((lambda *s: torch.randn(*s, dtype=torch.bfloat16) * 0.05)(B, S, D)),
            "w1": _w((lambda *s: torch.randn(*s, dtype=torch.bfloat16) * 0.05)(D, Dff)),
            "w2": _w((lambda *s: torch.randn(*s, dtype=torch.bfloat16) * 0.05)(Dff, D)),
        }
    _B_in = _B_setup()

    return {
        "A_x": _A_in["x"],
        "A_wqkv": _A_in["wqkv"],
        "A_wo": _A_in["wo"],
        "B_x": _B_in["x"],
        "B_w1": _B_in["w1"],
        "B_w2": _B_in["w2"],
    }

def reference(A_x, A_wqkv, A_wo, B_x, B_w1, B_w2):
    def _A_ref(x, wqkv, wo):
        B, S, D = x.shape
        H = 16; Dh = D // H
        qkv = (lambda x, *d: x.permute(*d))((x @ wqkv).reshape(B, S, 3, H, Dh), 2, 0, 3, 1, 4)
        q, k, v = qkv[0], qkv[1], qkv[2]
        scale = Dh ** -0.5
        scores = torch.einsum("bhqd,bhkd->bhqk", q, k) * scale
        p = _softmax(scores, axis=-1)
        o = torch.einsum("bhqk,bhkd->bhqd", p, v)
        return (lambda x, *d: x.permute(*d))(o, 0, 2, 1, 3).reshape(B, S, D) @ wo

    def _B_ref(x, w1, w2):
        h = torch.einsum("bsd,df->bsf", x, w1)
        zero = torch.zeros_like(h)
        h = torch.maximum(h, zero)
        return torch.einsum("bsf,fd->bsd", h, w2)

    x = A_x
    h = x + _A_ref(_layernorm(x, axis=-1), A_wqkv, A_wo)
    h2 = h + _B_ref(_layernorm(h, axis=-1), B_w1, B_w2)
    return h2
```

```python
import re

TRANS = ("v_exp_", "v_log_", "v_rcp_", "v_rsq_", "v_sqrt_", "v_sin_", "v_cos_")


def parse_reg(tok):
    tok = tok.strip()
    neg = tok.startswith("-")
    if neg:
        tok = tok[1:]
    if tok.startswith("|") and tok.endswith("|"):
        tok = tok[1:-1]
    if tok.startswith("abs(") and tok.endswith(")"):
        tok = tok[4:-1]
    m = re.fullmatch(r"([vas])(\d+)", tok)
    if m:
        return {(m.group(1), int(m.group(2)))}
    m = re.fullmatch(r"([vas])\[(\d+):(\d+)\]", tok)
    if m:
        return {(m.group(1), i) for i in range(int(m.group(2)), int(m.group(3)) + 1)}
    if tok == "vcc":
        return {("s", 106), ("s", 107)}
    if tok == "vcc_lo":
        return {("s", 106)}
    if tok == "vcc_hi":
        return {("s", 107)}
    if tok == "m0":
        return {("s", 124)}
    if tok == "exec":
        return {("s", 126), ("s", 127)}
    return set()


class Ins:
    __slots__ = ("text", "op", "kind", "wr", "rd", "srcc", "ab", "states", "sdata", "dpp", "lds", "passes")

    def __init__(self, text):
        self.text = text
        t = text.split(";")[0].strip()
        self.op = t.split()[0] if t else ""
        rest = t[len(self.op):].strip()
        ops = [o.strip() for o in rest.split(",")] if rest else []
        mods = ""
        if ops:
            last = ops[-1].split()
            if last:
                ops[-1] = last[0]
                mods = " ".join(last[1:])
        op = self.op
        self.wr, self.rd, self.srcc, self.ab, self.sdata = set(), set(), set(), set(), set()
        self.states = 1
        self.dpp = ("quad_perm" in mods) or ("row_" in mods) or ("_dpp" in op)
        self.lds = False
        self.passes = 0
        R = [parse_reg(o) for o in ops]
        if op.endswith(":") or op == "" or op.startswith("."):
            self.kind = "label"
            self.states = 0
        elif op == "s_nop":
            self.kind = "nop"
            self.states = int(ops[0], 0) + 1
        elif op.startswith("v_mfma"):
            self.kind = "mfma"
            self.passes = 8 if "32x32" in op else 4
            self.wr = R[0]
            self.ab = R[1] | R[2]
            self.srcc = R[3]
            self.rd = self.ab | self.srcc
        elif op.startswith("v_"):
            self.kind = "valu"
            if op.startswith(TRANS):
                self.kind = "trans"
            if op.startswith("v_dot"):
                self.kind = "dl"
            if op.startswith("v_permlane"):
                self.kind = "perm"
                self.wr = R[0] | R[1]
                self.rd = R[0] | R[1]
            else:
                self.wr = set(R[0]) if R else set()
                for r in R[1:]:
                    self.rd |= r
                if op.startswith(("v_fmac", "v_dot2c", "v_mac", "v_pk_fmac")):
                    self.rd |= R[0]
                    self.srcc = set(R[0])
                if "UNUSED_PRESERVE" in mods or "v_writelane" in op:
                    self.rd |= R[0]
                if op.startswith("v_cndmask") and len(ops) == 3:
                    self.rd |= parse_reg("vcc")
                if op.startswith("v_cmp") and not R[0]:
                    pass
                if "_co_" in op:
                    self.wr |= R[1]
        elif op.startswith(("buffer_", "global_")):
            self.kind = "vmem"
            self.lds = " lds" in (" " + mods)
            if "load" in op and not self.lds:
                self.wr = R[0]
                for r in R[1:]:
                    self.rd |= r
            elif "load" in op:
                for r in R:
                    self.rd |= r
                self.rd |= parse_reg("m0")
            elif "store" in op:
                for r in R:
                    self.rd |= r
                if "x4" in op or "x3" in op:
                    self.sdata = R[0] if op.startswith("buffer_") else R[1]
            else:
                for r in R:
                    self.rd |= r
                if "sc0" in mods:
                    self.wr = R[0]
        elif op.startswith("ds_"):
            self.kind = "ds"
            if op.startswith(("ds_read", "ds_bpermute", "ds_permute", "ds_swizzle")):
                self.wr = R[0]
                for r in R[1:]:
                    self.rd |= r
            else:
                for r in R:
                    self.rd |= r
        elif op.startswith("s_"):
            self.kind = "salu"
            if op.startswith(("s_cmp", "s_cbranch", "s_branch", "s_waitcnt", "s_barrier", "s_endpgm", "s_sleep", "s_setprio", "s_bitcmp")):
                for r in R:
                    self.rd |= r
            else:
                self.wr = set(R[0]) if R else set()
                for r in R[1:]:
                    self.rd |= r
                if "saveexec" in op:
                    self.wr |= parse_reg("exec")
        else:
            raise ValueError("unknown instruction: " + text)


VALUK = ("valu", "trans", "dl", "perm")


def need(p, c):
    n = 0
    pv = p.kind in VALUK
    cv = c.kind in VALUK
    pw_v = {r for r in p.wr if r[0] != "s"}
    pw_s = {r for r in p.wr if r[0] == "s"}
    if pv:
        if c.kind == "mfma" and pw_v & c.rd:
            n = max(n, 3 if p.kind == "dl" else 2)
        if p.kind == "trans" and cv and c.kind != "trans" and pw_v & c.rd:
            n = max(n, 1)
        if p.kind == "trans" and c.kind in ("vmem", "ds") and pw_v & c.rd:
            n = max(n, 1)
        if c.kind == "perm" and pw_v & c.rd:
            n = max(n, 2)
        if cv and c.dpp and pw_v & c.rd:
            n = max(n, 2)
        if c.op.startswith(("v_readlane", "v_readfirstlane")) and pw_v & c.rd:
            n = max(n, 1)
        if pw_s:
            if cv and pw_s & c.rd:
                n = max(n, 4 if c.op.startswith(("v_readlane", "v_writelane")) else 2)
            if c.kind == "vmem" and pw_s & c.rd:
                n = max(n, 5)
            if c.kind == "salu" and pw_s & c.rd:
                n = max(n, 1)
        if p.kind == "dl":
            if c.op == p.op:
                if pw_v & (c.rd - c.srcc):
                    n = max(n, 3)
            elif pw_v & (c.rd | c.wr):
                n = max(n, 3)
        if ("sdwa" in p.op or "op_sel" in p.text) and cv and pw_v & (c.rd | c.wr):
            n = max(n, 1)
    if p.kind == "mfma":
        big = {8: 12, 4: 8}[p.passes]
        if c.kind == "mfma":
            if p.wr & c.ab:
                n = max(n, big)
            if p.wr & c.srcc:
                if p.wr == c.srcc and p.passes == c.passes:
                    pass
                else:
                    n = max(n, {8: 10, 4: 6}[p.passes])
            elif p.wr & c.wr:
                n = max(n, big)
        elif p.wr & (c.rd | c.wr):
            n = max(n, big)
        if cv and p.srcc & c.wr:
            n = max(n, {8: 7, 4: 3}[p.passes])
        if c.kind in ("vmem", "ds") and p.srcc & c.wr:
            n = max(n, {8: 7, 4: 3}[p.passes])
    if p.kind == "salu" and ("s", 124) in p.wr and c.kind == "vmem" and c.lds:
        n = max(n, 1)
    if p.kind == "vmem" and p.sdata and p.sdata & c.wr:
        n = max(n, 2 if cv else 1)
    return n


class Asm:
    def __init__(self):
        self.ins = []

    def __call__(self, *lines):
        for l in lines:
            for x in l.split("\n"):
                x = x.strip()
                if x:
                    self.ins.append(Ins(x))

    def label(self, name):
        self.ins.append(Ins(name + ":"))

    def fix(self):
        out = []
        for c in self.ins:
            if c.kind != "label":
                req = 0
                d = 0
                for p in reversed(out):
                    if d >= 14:
                        break
                    if p.kind == "label":
                        continue
                    n = need(p, c)
                    if n > d:
                        req = max(req, n - d)
                    d += p.states
                while req > 0:
                    k = min(req, 16)
                    out.append(Ins(f"s_nop {k-1}"))
                    req -= k
            out.append(c)
        self.ins = out

    def verify_branches(self):
        idx = {i.op[:-1]: n for n, i in enumerate(self.ins) if i.kind == "label" and i.op.endswith(":")}
        bad = []
        for n, b in enumerate(self.ins):
            if b.op.startswith(("s_cbranch", "s_branch")):
                tgt = b.text.split(";")[0].split()[1]
                if tgt not in idx:
                    continue
                pre = [x for x in self.ins[max(0, n - 40):n + 1] if x.kind != "label"]
                post = [x for x in self.ins[idx[tgt]:idx[tgt] + 40] if x.kind != "label"]
                dc = 0
                for c in post:
                    if dc >= 14:
                        break
                    d = dc
                    for p in reversed(pre):
                        if d >= 14:
                            break
                        if need(p, c) > d:
                            bad.append((p.text, c.text, need(p, c), d))
                        d += p.states
                    dc += c.states
        return bad

    def text(self):
        return "\n".join(("" if i.kind == "label" else "  ") + i.text for i in self.ins)
```

```python
from asm import Asm
import math, struct, os

NAME = "sequential_preLN__softmax_full_mha__dense_activation_relu__prompt"
QF, KF, VF = 0x000000, 0x200000, 0x400000
OF, H2F = 0x600000, 0x800000
W1F, W2F, WOF = 0xA00000, 0xC00000, 0xE00000
HF = 0x1000000
SUM, SSQ = 0x1800000, 0x1840000
W1T = 29 * 1024

def f2u(x):
    return struct.unpack("<I", struct.pack("<f", x))[0]

QSCALE = f2u(28 ** -0.5 * math.log2(math.e))
ONES2 = 0x3F803F80

def vr(b, n=4):
    return f"v[{b}:{b+n-1}]"
def ar(b, n=4):
    return f"a[{b}:{b+n-1}]"

PROF = os.environ.get("PROF", "0") == "1"
PROFB = 0x1C00000
def stamp(a, i):
    if PROF:
        a(f"s_memrealtime s[{80+2*i}:{81+2*i}]")
def cstamp(a, i):
    if PROF:
        a(f"s_memtime s[{80+2*i}:{81+2*i}]")
def finish(a, kidx):
    a("s_waitcnt vmcnt(0)")
    if PROF:
        a("s_memrealtime s[94:95]", "s_waitcnt lgkmcnt(0)", "s_mov_b64 exec, 1")
        for i in range(8):
            a(f"v_mov_b32 v{8+i}, s{80+2*i}")
        a("s_lshl_b32 s10, s2, 2", "s_add_u32 s10, s10, s4", "s_lshl_b32 s10, s10, 5", f"s_add_u32 s10, s10, {PROFB + kidx*0x10000}",
          "v_mov_b32 v0, 0", "buffer_store_dwordx4 v[8:11], v0, s[36:39], s10 offen", "buffer_store_dwordx4 v[12:15], v0, s[36:39], s10 offen offset:16",
          "s_waitcnt vmcnt(0)")
    a("s_endpgm")
def prologue(a, nwg, endlabel):
    stamp(a, 0)
    a(f"s_cmp_ge_u32 s2, {nwg}", f"s_cbranch_scc1 {endlabel}",
      "s_load_dwordx16 s[16:31], s[0:1], 0", "s_load_dwordx2 s[32:33], s[0:1], 64",
      "v_and_b32 v1, 63, v0", "v_lshrrev_b32 v2, 6, v0", "s_nop 0", "v_readfirstlane_b32 s4, v2",
      "s_waitcnt lgkmcnt(0)",
      "s_mov_b32 s36, s32", "s_mov_b32 s37, s33", "s_mov_b32 s38, 0x10000000", "s_mov_b32 s39, 0x20000")

def srd(a, d, base, size):
    a(f"s_mov_b32 s{d}, s{base}", f"s_mov_b32 s{d+1}, s{base+1}", f"s_mov_b32 s{d+2}, {size}", f"s_mov_b32 s{d+3}, 0x20000")

def mfma(a, d, A, B, c=None):
    a(f"v_mfma_f32_32x32x16_bf16 {vr(d,16)}, {A}, {B}, {vr(d,16) if c is None else c}")

def half_sum(a, x, t, op="v_add_f32"):
    a(f"v_mov_b32 v{t}, v{x}", f"v_permlane32_swap_b32 v{x}, v{t}", f"{op} v{x}, v{x}, v{t}")

def split3(a, x, p1, p2, p3):
    a(f"v_and_b32 v{p1}, 0xffff0000, v{x}", f"v_sub_f32 v{p3}, v{x}, v{p1}",
      f"v_and_b32 v{p2}, 0xffff0000, v{p3}", f"v_sub_f32 v{p3}, v{p3}, v{p2}")

def pack_hi(a, d, lo, hi, ssel):
    a(f"v_perm_b32 v{d}, v{hi}, v{lo}, s{ssel}")

def ext_c(a, d, x, t, ssel):
    split3(a, x, t, t + 1, t + 2)
    pack_hi(a, d, t, t, ssel); pack_hi(a, d + 1, t + 1, t + 1, ssel); pack_hi(a, d + 2, t, t + 2, ssel)
    a(f"v_mov_b32 v{d+3}, 0")

def ext_m(a, d, x, t, ssel):
    split3(a, x, t, t + 1, t + 2)
    pack_hi(a, d, t, t + 1, ssel); pack_hi(a, d + 1, t, t + 1, ssel); pack_hi(a, d + 2, t + 2, t, ssel)
    a(f"v_mov_b32 v{d+3}, 0")
```

```python
import re

TRANS = ("v_exp_", "v_log_", "v_rcp_", "v_rsq_", "v_sqrt_", "v_sin_", "v_cos_")


def parse_reg(tok):
    tok = tok.strip()
    neg = tok.startswith("-")
    if neg:
        tok = tok[1:]
    if tok.startswith("|") and tok.endswith("|"):
        tok = tok[1:-1]
    if tok.startswith("abs(") and tok.endswith(")"):
        tok = tok[4:-1]
    m = re.fullmatch(r"([vas])(\d+)", tok)
    if m:
        return {(m.group(1), int(m.group(2)))}
    m = re.fullmatch(r"([vas])\[(\d+):(\d+)\]", tok)
    if m:
        return {(m.group(1), i) for i in range(int(m.group(2)), int(m.group(3)) + 1)}
    if tok == "vcc":
        return {("s", 106), ("s", 107)}
    if tok == "vcc_lo":
        return {("s", 106)}
    if tok == "vcc_hi":
        return {("s", 107)}
    if tok == "m0":
        return {("s", 124)}
    if tok == "exec":
        return {("s", 126), ("s", 127)}
    return set()


class Ins:
    __slots__ = ("text", "op", "kind", "wr", "rd", "srcc", "ab", "states", "sdata", "dpp", "lds", "passes")

    def __init__(self, text):
        self.text = text
        t = text.split(";")[0].strip()
        self.op = t.split()[0] if t else ""
        rest = t[len(self.op):].strip()
        ops = [o.strip() for o in rest.split(",")] if rest else []
        mods = ""
        if ops:
            last = ops[-1].split()
            if last:
                ops[-1] = last[0]
                mods = " ".join(last[1:])
        op = self.op
        self.wr, self.rd, self.srcc, self.ab, self.sdata = set(), set(), set(), set(), set()
        self.states = 1
        self.dpp = ("quad_perm" in mods) or ("row_" in mods) or ("_dpp" in op)
        self.lds = False
        self.passes = 0
        R = [parse_reg(o) for o in ops]
        if op.endswith(":") or op == "" or op.startswith("."):
            self.kind = "label"
            self.states = 0
        elif op == "s_nop":
            self.kind = "nop"
            self.states = int(ops[0], 0) + 1
        elif op.startswith("v_mfma"):
            self.kind = "mfma"
            self.passes = 8 if "32x32" in op else (2 if "4x4x4" in op else 4)
            self.wr = R[0]
            self.ab = R[1] | R[2]
            self.srcc = R[3]
            self.rd = self.ab | self.srcc
        elif op.startswith("v_"):
            self.kind = "valu"
            if op.startswith(TRANS):
                self.kind = "trans"
            if op.startswith("v_dot"):
                self.kind = "dl"
            if op.startswith("v_permlane"):
                self.kind = "perm"
                self.wr = R[0] | R[1]
                self.rd = R[0] | R[1]
            else:
                self.wr = set(R[0]) if R else set()
                for r in R[1:]:
                    self.rd |= r
                if op.startswith(("v_fmac", "v_dot2c", "v_mac", "v_pk_fmac")):
                    self.rd |= R[0]
                    self.srcc = set(R[0])
                if "UNUSED_PRESERVE" in mods or "v_writelane" in op:
                    self.rd |= R[0]
                if op.startswith("v_cndmask") and len(ops) == 3:
                    self.rd |= parse_reg("vcc")
                if op.startswith("v_cmp") and not R[0]:
                    pass
                if "_co_" in op:
                    self.wr |= R[1]
        elif op.startswith(("buffer_", "global_")):
            self.kind = "vmem"
            self.lds = " lds" in (" " + mods)
            if "load" in op and not self.lds:
                self.wr = R[0]
                for r in R[1:]:
                    self.rd |= r
            elif "load" in op:
                for r in R:
                    self.rd |= r
                self.rd |= parse_reg("m0")
            elif "store" in op:
                for r in R:
                    self.rd |= r
                if "x4" in op or "x3" in op:
                    self.sdata = R[0] if op.startswith("buffer_") else R[1]
            else:
                for r in R:
                    self.rd |= r
                if "sc0" in mods:
                    self.wr = R[0]
        elif op.startswith("ds_"):
            self.kind = "ds"
            if op.startswith(("ds_read", "ds_bpermute", "ds_permute", "ds_swizzle")):
                self.wr = R[0]
                for r in R[1:]:
                    self.rd |= r
            else:
                for r in R:
                    self.rd |= r
        elif op.startswith("s_"):
            self.kind = "salu"
            if op.startswith(("s_cmp", "s_cbranch", "s_branch", "s_waitcnt", "s_barrier", "s_endpgm", "s_sleep", "s_setprio", "s_bitcmp")):
                for r in R:
                    self.rd |= r
            else:
                self.wr = set(R[0]) if R else set()
                for r in R[1:]:
                    self.rd |= r
                if "saveexec" in op:
                    self.wr |= parse_reg("exec")
        else:
            raise ValueError("unknown instruction: " + text)


VALUK = ("valu", "trans", "dl", "perm")


def need(p, c):
    n = 0
    pv = p.kind in VALUK
    cv = c.kind in VALUK
    pw_v = {r for r in p.wr if r[0] != "s"}
    pw_s = {r for r in p.wr if r[0] == "s"}
    if pv:
        if c.kind == "mfma" and pw_v & c.rd:
            n = max(n, 3 if p.kind == "dl" else 2)
        if p.kind == "trans" and cv and c.kind != "trans" and pw_v & c.rd:
            n = max(n, 1)
        if p.kind == "trans" and c.kind in ("vmem", "ds") and pw_v & c.rd:
            n = max(n, 1)
        if c.kind == "perm" and pw_v & c.rd:
            n = max(n, 2)
        if cv and c.dpp and pw_v & c.rd:
            n = max(n, 2)
        if c.op.startswith(("v_readlane", "v_readfirstlane")) and pw_v & c.rd:
            n = max(n, 1)
        if pw_s:
            if cv and pw_s & c.rd:
                n = max(n, 4 if c.op.startswith(("v_readlane", "v_writelane")) else 2)
            if c.kind == "vmem" and pw_s & c.rd:
                n = max(n, 5)
            if c.kind == "salu" and pw_s & c.rd:
                n = max(n, 1)
        if p.kind == "dl":
            if c.op == p.op:
                if pw_v & (c.rd - c.srcc):
                    n = max(n, 3)
            elif pw_v & (c.rd | c.wr):
                n = max(n, 3)
        if ("sdwa" in p.op or "op_sel" in p.text) and cv and pw_v & (c.rd | c.wr):
            n = max(n, 1)
    if p.kind == "mfma":
        big = {8: 12, 4: 8, 2: 5}[p.passes]
        if c.kind == "mfma":
            if p.wr & c.ab:
                n = max(n, big)
            if p.wr & c.srcc:
                if p.wr == c.srcc and p.passes == c.passes:
                    if p.passes == 2:
                        n = max(n, 2)
                else:
                    n = max(n, {8: 10, 4: 6, 2: 4}[p.passes])
            elif p.wr & c.wr:
                n = max(n, big)
        elif p.wr & (c.rd | c.wr):
            n = max(n, big)
        if cv and p.srcc & c.wr:
            n = max(n, {8: 7, 4: 3, 2: 1}[p.passes])
        if c.kind in ("vmem", "ds") and p.srcc & c.wr:
            n = max(n, {8: 7, 4: 3, 2: 1}[p.passes])
    if p.kind == "salu" and ("s", 124) in p.wr and c.kind == "vmem" and c.lds:
        n = max(n, 1)
    if p.kind == "vmem" and p.sdata and p.sdata & c.wr:
        n = max(n, 2 if cv else 1)
    return n


class Asm:
    def __init__(self):
        self.ins = []

    def __call__(self, *lines):
        for l in lines:
            for x in l.split("\n"):
                x = x.strip()
                if x:
                    self.ins.append(Ins(x))

    def label(self, name):
        self.ins.append(Ins(name + ":"))

    def fix(self):
        out = []
        for c in self.ins:
            if c.kind != "label":
                req = 0
                d = 0
                for p in reversed(out):
                    if d >= 14:
                        break
                    if p.kind == "label":
                        continue
                    n = need(p, c)
                    if n > d:
                        req = max(req, n - d)
                    d += p.states
                while req > 0:
                    k = min(req, 16)
                    out.append(Ins(f"s_nop {k-1}"))
                    req -= k
            out.append(c)
        self.ins = out

    def verify_branches(self):
        idx = {i.op[:-1]: n for n, i in enumerate(self.ins) if i.kind == "label" and i.op.endswith(":")}
        bad = []
        for n, b in enumerate(self.ins):
            if b.op.startswith(("s_cbranch", "s_branch")):
                tgt = b.text.split(";")[0].split()[1]
                if tgt not in idx:
                    continue
                pre = [x for x in self.ins[max(0, n - 40):n + 1] if x.kind != "label"]
                post = [x for x in self.ins[idx[tgt]:idx[tgt] + 40] if x.kind != "label"]
                dc = 0
                for c in post:
                    if dc >= 14:
                        break
                    d = dc
                    for p in reversed(pre):
                        if d >= 14:
                            break
                        if need(p, c) > d:
                            bad.append((p.text, c.text, need(p, c), d))
                        d += p.states
                    dc += c.states
        return bad

    def text(self):
        return "\n".join(("" if i.kind == "label" else "  ") + i.text for i in self.ins)
```

```python
from asm import Asm
import math, struct, os

NAME = "sequential_preLN__softmax_full_mha__dense_activation_relu__prompt"
QF, KF, VF = 0x000000, 0x200000, 0x400000
OF, H2F = 0x600000, 0x800000
W1F, W2F, WOF = 0xA00000, 0xC00000, 0xE00000
PF = 0x1000000
W1T = 29 * 1024

def f2u(x):
    return struct.unpack("<I", struct.pack("<f", x))[0]

QSCALE = f2u(28 ** -0.5 * math.log2(math.e))
ONES2 = 0x3F803F80

def vr(b, n=4):
    return f"v[{b}:{b+n-1}]"
def ar(b, n=4):
    return f"a[{b}:{b+n-1}]"

class VM:
    def __init__(self, a):
        self.a = a
        self.seq = []
    def __call__(self, tag, *ins):
        for i in ins:
            self.a(i)
            if i.startswith(("buffer_", "global_")):
                self.seq.append(tag)
    def cnt(self, *tags):
        last = max(i for i, t in enumerate(self.seq) if t in tags)
        n = len(self.seq) - 1 - last
        assert n <= 63
        return n
    def wait(self, *tags, extra=""):
        self.a(f"s_waitcnt vmcnt({self.cnt(*tags)}){extra}")

PROF = os.environ.get("PROF", "0") == "1"
PROFB = 0x2000000
NST = 12
def stamp(a, i):
    if PROF:
        a(f"s_memrealtime s[{76+2*i}:{77+2*i}]")
def cstamp(a, i):
    if PROF:
        a(f"s_memtime s[{76+2*i}:{77+2*i}]")
def finish(a, kidx):
    a("s_waitcnt vmcnt(0)")
    if PROF:
        a(f"s_memrealtime s[{76+2*(NST-1)}:{77+2*(NST-1)}]", "s_waitcnt lgkmcnt(0)", "s_mov_b64 exec, 1")
        for i in range(NST):
            a(f"v_mov_b32 v{8+i}, s{76+2*i}")
        a("s_lshl_b32 s10, s2, 2", "s_add_u32 s10, s10, s4", "s_lshl_b32 s10, s10, 6", f"s_add_u32 s10, s10, {PROFB + kidx*0x10000}",
          "v_mov_b32 v0, 0")
        for i in range(NST // 4):
            a(f"buffer_store_dwordx4 v[{8+4*i}:{11+4*i}], v0, s[36:39], s10 offen offset:{16*i}")
        a("s_waitcnt vmcnt(0)")
    a("s_endpgm")
def prologue(a, nwg, endlabel):
    if PROF:
        for i in range(NST):
            a(f"s_mov_b64 s[{76+2*i}:{77+2*i}], 0")
    stamp(a, 0)
    a(f"s_cmp_ge_u32 s2, {nwg}", f"s_cbranch_scc1 {endlabel}",
      "s_load_dwordx16 s[16:31], s[0:1], 0", "s_load_dwordx2 s[32:33], s[0:1], 64",
      "v_and_b32 v1, 63, v0", "v_lshrrev_b32 v2, 6, v0", "s_nop 0", "v_readfirstlane_b32 s4, v2")
def prologue2(a):
    a("s_waitcnt lgkmcnt(0)",
      "s_mov_b32 s36, s32", "s_mov_b32 s37, s33", "s_mov_b32 s38, 0x10000000", "s_mov_b32 s39, 0x20000")

def srd(a, d, base, size):
    a(f"s_mov_b32 s{d}, s{base}", f"s_mov_b32 s{d+1}, s{base+1}", f"s_mov_b32 s{d+2}, {size}", f"s_mov_b32 s{d+3}, 0x20000")

def mfma(a, d, A, B, c=None):
    a(f"v_mfma_f32_32x32x16_bf16 {vr(d,16)}, {A}, {B}, {vr(d,16) if c is None else c}")

def half_sum(a, x, t, op="v_add_f32"):
    a(f"v_mov_b32 v{t}, v{x}", f"v_permlane32_swap_b32 v{x}, v{t}", f"{op} v{x}, v{x}, v{t}")

def split3(a, x, p1, p2, p3):
    a(f"v_and_b32 v{p1}, 0xffff0000, v{x}", f"v_sub_f32 v{p3}, v{x}, v{p1}",
      f"v_and_b32 v{p2}, 0xffff0000, v{p3}", f"v_sub_f32 v{p3}, v{p3}, v{p2}")

def pack_hi(a, d, lo, hi, ssel):
    a(f"v_perm_b32 v{d}, v{hi}, v{lo}, s{ssel}")

def ext_c(a, d, x, t, ssel):
    split3(a, x, t, t + 1, t + 2)
    pack_hi(a, d, t, t, ssel); pack_hi(a, d + 1, t + 1, t + 1, ssel); pack_hi(a, d + 2, t, t + 2, ssel)
    a(f"v_mov_b32 v{d+3}, 0")

def ext_m(a, d, x, t, ssel):
    split3(a, x, t, t + 1, t + 2)
    pack_hi(a, d, t, t + 1, ssel); pack_hi(a, d + 1, t, t + 1, ssel); pack_hi(a, d + 2, t + 2, t, ssel)
    a(f"v_mov_b32 v{d+3}, 0")
```

```python
from common import *

WB = 114688
EXB = WB + 36864
RSB = EXB + 3072
TCB = RSB + 512
LDS = TCB + 1024
ACC = 16
FR = 64
TF = 128
CX = 144
VXA = 160
VWA = 164
VXD = [165, 166]
VWD = [167, 168, 169]
VTD, VTA, VTB = 171, 172, 173
VL16 = 174
VEX = 175
VM1 = 176
SUMR, SSQR = 4, 8
CS = 180
CS2 = 192
TCS = 204
VONE = 208
XAH = int(os.environ.get("XAH", "4"))
NPRO = int(os.environ.get("NPRO", "14"))
ROT = int(os.environ.get("ROT", "1"))

def m4(a, d, A, B):
    a(f"v_mfma_f32_4x4x4_16b_bf16 {vr(d)}, {vr(A,2)}, {vr(B,2)}, {vr(d)}")


def xdma(c):
    out = []
    for q in range(4):
        out.append([f"s_add_u32 m0, s9, {c * 4096 + q * 1024}",
                    f"s_add_u32 s10, s8, {q * 7168}",
                    f"buffer_load_dwordx4 v{VXD[q >> 1]}, s[40:43], s10 offen lds"])
    out[-1] += ["s_add_u32 s8, s8, 128", "s_cmp_eq_u32 s8, s72", "s_cselect_b32 s10, 896, 0", "s_sub_u32 s8, s8, s10"]
    return out


def wdma(c):
    out = []
    for e in range(3):
        out.append([f"s_add_u32 m0, s12, {(c % 3) * 12288 + e * 1024}",
                    "s_nop 0",
                    f"buffer_load_dwordx4 v{VWD[e]}, s[44:47], s11 offen lds"])
    out[-1] += [f"s_add_u32 s11, s11, {64*2688}", "s_cmp_eq_u32 s11, s73", f"s_cselect_b32 s10, {448*2688}, 0", "s_sub_u32 s11, s11, s10"]
    return out


def reads(s):
    c, sg = s >> 2, s & 3
    b = FR + 16 * sg
    out = [f"ds_read_b128 {vr(b)}, v{VXA + sg} offset:{c * 4096}"]
    so = (c % 3) * 12288 + sg * 3072
    for i in range(3):
        for e in range(2):
            r = b + 4 + i * 4 + e * 2
            out.append(f"ds_read_b64_tr_b16 v[{r}:{r+1}], v{VWA} offset:{so + e * 768 + 56 * i}")
    return out


def body(a, vm0, pend0, var, tag):
    vm = VM(a)
    vm.seq = list(vm0.seq)
    stamp(a, 3)
    vm.wait("x0", "w0")
    a("s_barrier")
    stamp(a, 4)
    a(*reads(0))
    a(*reads(1))
    pend = list(pend0)
    for s in range(28):
        c, sg = s >> 2, s & 3
        if sg == 2 and c < 6:
            assert not any(t in (f"x{c+1}", f"w{c+1}") for t, _ in pend)
            vm.wait(f"x{c+1}", f"w{c+1}", extra=" lgkmcnt(0)")
            a("s_barrier")
            if c >= 1:
                stamp(a, 4 + c)
            if c + 3 < 7:
                pend += [(f"w{c+3}", g) for g in wdma(c + 3)]
            if c + XAH < 7:
                pend += [(f"x{c+XAH}", g) for g in xdma(c + XAH)]
            if c == 3:
                for i in range(4):
                    pend.append(("t", [f"s_add_u32 m0, s9, {i*1024}", "s_nop 0", f"buffer_load_dwordx4 v{VTD}, s[48:51], s62 offen lds",
                                       "s_add_u32 s62, s62, s63"]))
                for i in range(2):
                    pend.append(("f", [f"buffer_store_dwordx4 {vr(VM1)}, v{VL16}, s[36:39], s68 offen offset:{i*1024}"]))
        elif s == 24:
            a("s_waitcnt lgkmcnt(0)", "s_barrier")
        elif s >= 26:
            a(f"s_waitcnt lgkmcnt({7 if s == 26 else 0})")
        else:
            a("s_waitcnt lgkmcnt(7)")
        nxt = reads(s + 2) if s + 2 < 28 else []
        extra = [[], [], []]
        if s == 21:
            assert not pend
            extra[0].append(("W", "t"))
            for i in range(4):
                extra[i % 3] += [f"ds_read_b64_tr_b16 v[{TF+4*i}:{TF+4*i+1}], v{VTA} offset:{i*1024}",
                                 f"ds_read_b64_tr_b16 v[{TF+4*i+2}:{TF+4*i+3}], v{VTB} offset:{i*1024}"]
        if s == 24:
            for i in range(3):
                extra[i].append(f"ds_read_b128 {vr(CX+4*i)}, v{VEX} offset:{i*1024}")
        x = vr(FR + 16 * sg)
        for i in range(3):
            w = vr(FR + 16 * sg + 4 + 4 * i)
            A, B = (w, x) if var[i] == "T" else (x, w)
            mfma(a, ACC + 16 * i, A, B, "0" if s == 0 else None)
            a(*nxt[[0, 3, 5][i]:[3, 5, 7][i]])
            for e in extra[i]:
                if isinstance(e, tuple):
                    vm.wait(e[1])
                else:
                    a(e)
            if pend:
                t, g = pend.pop(0)
                vm(t, *g)
            if i < 2:
                xr = FR + 16 * sg + 2 * i
                m4(a, SUMR, VONE, xr)
                m4(a, SSQR, xr, xr)
            if c == 6 and i == 2:
                for r in (0, 2):
                    for ii in range(3):
                        m4(a, CS2 + 4 * ii, VONE, FR + 16 * sg + 4 + ii * 4 + r)
            elif i == 2:
                lab = f"K1{tag}_S{s}"
                a(f"s_cmp_eq_u32 s4, {sg}", f"s_cbranch_scc0 {lab}")
                for r in (0, 2):
                    for ii in range(3):
                        m4(a, CS + 4 * ii, VONE, FR + 16 * sg + 4 + ii * 4 + r)
                a.label(lab)
        if s == 22:
            a("s_cmp_eq_u32 s65, 0", f"s_cbranch_scc1 K1{tag}_T0")
            for i in range(3):
                a(f"buffer_store_dwordx4 {vr(TF+4*i)}, v{VL16}, s[36:39], s64 offen offset:{i*1024}")
                for r in (0, 2):
                    m4(a, TCS, VONE, TF + 4 * i + r)
            a("s_cmp_eq_u32 s65, 3", f"s_cbranch_scc1 K1{tag}_T0")
            a(f"buffer_store_dwordx4 {vr(TF+12)}, v{VL16}, s[36:39], s64 offen offset:3072")
            for r in (0, 2):
                m4(a, TCS, VONE, TF + 12 + r)
            a.label(f"K1{tag}_T0")
        if s == 23:
            a("s_lshl_b32 s10, s4, 2", f"v_add_u32 v13, s10, v{VEX}", "s_nop 3")
            for i in range(3):
                a(f"ds_write_b32 v13, v{CS+4*i} offset:{i*1024}")
            a(f"ds_write_b32 v13, v{TCS} offset:{TCB-EXB}")
        if s == 25:
            a("s_cmp_eq_u32 s66, 0", f"s_cbranch_scc1 K1{tag}_T1",
              f"ds_read_b128 {vr(TF)}, v{VEX} offset:{TCB-EXB}", "s_waitcnt lgkmcnt(0)",
              f"v_add_f32 v{TF}, v{TF}, v{TF+1}", f"v_add_f32 v{TF+2}, v{TF+2}, v{TF+3}", f"v_add_f32 v{TF}, v{TF}, v{TF+2}")
            half_sum(a, TF, TF + 1)
            ext_c(a, TF + 4, TF, TF + 8, 15)
            a("s_mov_b64 exec, s[70:71]", f"buffer_store_dwordx4 {vr(TF+4)}, v{VL16}, s[36:39], s67 offen", "s_mov_b64 exec, -1")
            a.label(f"K1{tag}_T1")
    stamp(a, 10)
    a(f"v_cndmask_b32 v{SSQR}, v{SSQR}, v{SSQR+1}, s[74:75]", f"v_cndmask_b32 v{SSQR+2}, v{SSQR+2}, v{SSQR+3}, s[74:75]",
      "s_mov_b32 s10, 0xcccccccc", "s_mov_b32 s11, 0xcccccccc", f"v_cndmask_b32 v{SSQR}, v{SSQR}, v{SSQR+2}, s[10:11]")
    half_sum(a, SUMR, 13)
    half_sum(a, SSQR, 14)
    a(f"s_mov_b32 s10, {f2u(1.0/448)}", f"v_mul_f32 v{SUMR}, s10, v{SUMR}", f"v_mul_f32 v{SSQR}, s10, v{SSQR}",
      f"v_fma_f32 v{SSQR}, -v{SUMR}, v{SUMR}, v{SSQR}", f"v_max_f32 v{SSQR}, 0, v{SSQR}",
      f"v_add_f32 v{SSQR}, {f2u(1e-5)}, v{SSQR}", f"v_rsq_f32 v{SSQR}, v{SSQR}",
      f"v_sub_f32 v{SUMR}, 0, v{SUMR}")
    hasN = "N" in var
    RS = 112
    if hasN:
        a("v_and_b32 v13, 31, v1", "v_lshlrev_b32 v13, 2, v13", "s_lshl_b32 s10, s4, 7", f"s_add_u32 s10, s10, {RSB}",
          "v_add_u32 v13, s10, v13", f"ds_write_b32 v13, v{SSQR}",
          "v_lshrrev_b32 v14, 5, v1", "v_lshlrev_b32 v14, 4, v14", "v_add_u32 v14, s10, v14")
    EM = 64
    ext_m(a, EM, SUMR, 68, 15)
    if hasN:
        a("s_waitcnt lgkmcnt(0)")
        for q in range(4):
            a(f"ds_read_b128 {vr(RS+4*q)}, v14 offset:{q*32}")
    for i in range(3):
        r = CX + 4 * i
        a(f"v_add_f32 v{r}, v{r}, v{r+1}", f"v_add_f32 v{r+2}, v{r+2}, v{r+3}", f"v_add_f32 v{r}, v{r}, v{CS2+4*i}", f"v_add_f32 v{r}, v{r}, v{r+2}")
        EC = 72 + 8 * i
        ext_c(a, EC, r, EC + 4, 15)
        A, B = (vr(EC), vr(EM)) if var[i] == "T" else (vr(EM), vr(EC))
        mfma(a, ACC + 16 * i, A, B)
    if hasN:
        a("v_and_b32 v13, 31, v1", "v_cmp_eq_u32 vcc, 28, v13", f"v_cndmask_b32 v12, 0, v{VONE}, vcc",
          "v_cmp_le_u32 s[60:61], 28, v13", "s_waitcnt lgkmcnt(0)")
    for i in range(3):
        acc = ACC + 16 * i
        P = 128 + 8 * i
        if var[i] == "T":
            a(f"s_add_u32 s10, s13, {i}", "s_cmp_lt_u32 s10, 16", f"s_cselect_b32 s56, {QSCALE}, 1.0", f"s_cselect_b32 s57, 0, {ONES2}", "s_lshr_b32 s59, s57, 16",
              f"v_mul_f32 v14, s56, v{SSQR}", f"v_mul_f32 v15, s56, v{SSQR}")
        for p in range(8):
            sc = "v[14:15]" if var[i] == "T" else f"v[{RS+2*p}:{RS+2*p+1}]"
            a(f"v_pk_mul_f32 v[{acc+2*p}:{acc+2*p+1}], v[{acc+2*p}:{acc+2*p+1}], {sc}")
        for p in range(8):
            a(f"v_cvt_pk_bf16_f32 v{P+p}, v{acc+2*p}, v{acc+2*p+1}")
        if var[i] == "T":
            a("s_mov_b32 exec_lo, 0", f"v_mov_b32 v{P+6}, s57", f"v_mov_b32 v{P+7}, s59", "s_mov_b32 exec_lo, -1")
        else:
            a("s_mov_b64 exec, s[60:61]")
            for p in range(8):
                a(f"v_mov_b32 v{P+p}, v12")
            a("s_mov_b64 exec, -1")
        a(f"buffer_store_dwordx4 {vr(P)}, v{VL16}, s[36:39], s14 offen", f"buffer_store_dwordx4 {vr(P+4)}, v{VL16}, s[36:39], s14 offen offset:1024",
          "s_add_u32 s14, s14, 131072")
    finish(a, 0)


def gen_K1():
    a = Asm()
    vm = VM(a)
    prologue(a, 256, "K1_END")
    a("v_lshrrev_b32 v2, 3, v1", "v_mul_u32_u24 v2, 896, v2", "v_bfe_u32 v3, v1, 4, 2", "v_and_b32 v9, 7, v1", "v_xor_b32 v3, v3, v9",
      "v_lshlrev_b32 v3, 4, v3", f"v_add_u32 v{VXD[0]}, v2, v3", f"v_xor_b32 v{VXD[1]}, 64, v{VXD[0]}")
    a("s_and_b32 s5, s2, 7", "s_lshr_b32 s6, s2, 3",
      "s_lshr_b32 s7, s5, 1", "s_lshl_b32 s7, s7, 2", "s_and_b32 s10, s6, 3", "s_add_u32 s7, s7, s10",
      "s_and_b32 s3, s5, 1", "s_lshl_b32 s3, s3, 3", "s_lshr_b32 s10, s6, 2", "s_add_u32 s3, s3, s10",
      "s_lshl_b32 s7, s7, 2", "s_add_u32 s7, s7, s4",
      f"s_mul_i32 s8, s7, {32*896}",
      "s_mul_i32 s9, s4, 28672",
      "s_and_b32 s58, s3, 8",
      "s_mul_i32 s11, s3, 168", "s_sub_u32 s11, s11, s58", f"s_mul_i32 s10, s4, {16*2688}", "s_add_u32 s11, s11, s10",
      "s_mul_i32 s12, s4, 3072", f"s_add_u32 s12, s12, {WB}",
      "s_mul_i32 s13, s3, 3",
      "s_lshl_b32 s14, s13, 17", "s_lshl_b32 s10, s7, 11", "s_add_u32 s14, s14, s10",
      "s_add_u32 s72, s8, 896", f"s_add_u32 s73, s11, {448*2688}")
    if ROT:
        a("s_lshr_b32 s10, s6, 2", "s_and_b32 s52, s6, 3", "s_lshl_b32 s52, s52, 1", "s_add_u32 s10, s10, s52",
          "s_cmp_ge_u32 s10, 7", "s_cselect_b32 s52, 7, 0", "s_sub_u32 s10, s10, s52",
          "s_lshl_b32 s52, s10, 7", "s_add_u32 s8, s8, s52", f"s_mul_i32 s52, s10, {64*2688}", "s_add_u32 s11, s11, s52")
    for e in range(3):
        a(f"v_add_u32 v2, {64*e}, v1", "v_mul_u32_u24 v3, 171, v2", "v_lshrrev_b32 v3, 11, v3",
          "v_mul_u32_u24 v9, 12, v3", "v_sub_u32 v9, v2, v9", "v_min_u32 v9, 10, v9", "v_lshlrev_b32 v9, 4, v9",
          "v_mul_u32_u24 v3, 2688, v3", f"v_add_u32 v{VWD[e]}, v3, v9")
    prologue2(a)
    stamp(a, 1)
    srd(a, 40, 16, 1835008)
    srd(a, 44, 18, 1204224)
    pend = []
    for c in range(max(3, XAH)):
        if c < XAH:
            pend += [(f"x{c}", g) for g in xdma(c)]
        if c < 3:
            pend += [(f"w{c}", g) for g in wdma(c)]
    for t, g in pend[:NPRO]:
        vm(t, *g)
    pend = pend[NPRO:]
    stamp(a, 2)
    a("v_and_b32 v2, 31, v1", "v_bfe_u32 v3, v1, 1, 2", "v_bfe_u32 v9, v1, 4, 1", "v_lshlrev_b32 v9, 2, v9", "v_or_b32 v3, v3, v9",
      "v_lshrrev_b32 v9, 5, v1", "v_xor_b32 v3, v3, v9", "v_lshlrev_b32 v3, 4, v3", "v_lshlrev_b32 v2, 7, v2", "v_add_u32 v2, v2, v3")
    for sg in range(4):
        a(f"v_xor_b32 v3, {sg << 5}, v2", f"v_add_u32 v{VXA+sg}, s9, v3")
    a("v_lshrrev_b32 v2, 5, v1", "v_lshlrev_b32 v2, 3, v2", "v_bfe_u32 v3, v1, 2, 2", "v_add_u32 v2, v2, v3", "v_mul_u32_u24 v2, 192, v2",
      "v_bfe_u32 v3, v1, 4, 1", "v_lshlrev_b32 v3, 5, v3", "v_add_u32 v2, v2, v3",
      "v_and_b32 v3, 3, v1", "v_lshlrev_b32 v3, 3, v3", "v_add_u32 v2, v2, v3",
      f"s_add_u32 s10, s58, {WB}", f"v_add_u32 v{VWA}, s10, v2",
      f"v_mov_b32 v{VONE}, {ONES2}", f"v_mov_b32 v{VONE+1}, {ONES2}", "s_mov_b32 s15, 0x07060302",
      "s_mov_b32 s74, 0xaaaaaaaa", "s_mov_b32 s75, 0xaaaaaaaa")
    for r in list(range(4, 12)) + list(range(CS, TCS + 4)):
        a(f"v_mov_b32 v{r}, 0")
    for r in range(4):
        a(f"v_mov_b32 v{VM1+r}, -1")
    a("s_mov_b32 s66, 0", "s_mov_b32 s52, 256", "s_mov_b32 s53, 512",
      "s_cmp_ge_u32 s2, 112", "s_cbranch_scc1 K1_J1")
    srd(a, 48, 24, 1605632)
    a("s_lshr_b32 s54, s2, 1", "s_and_b32 s55, s2, 1", "s_mov_b32 s5, 3584", "s_lshl_b32 s6, s54, 6", "s_sub_u32 s65, 4, s55",
      "s_mul_i32 s62, s4, s65", "s_lshl_b32 s10, s55, 4", "s_add_u32 s62, s62, s10",
      f"s_mul_i32 s67, s54, {W1T}", f"s_add_u32 s67, s67, {W1F}", "s_lshl_b32 s64, s62, 10", "s_add_u32 s64, s64, s67", "s_add_u32 s67, s67, 28672",
      "s_cmp_eq_u32 s4, 0", "s_cselect_b32 s66, 1, 0", "s_sub_u32 s71, 0, s55", "s_not_b32 s70, s71", "s_branch K1_JC")
    a.label("K1_J1")
    a("s_cmp_ge_u32 s2, 210", "s_cbranch_scc1 K1_J2")
    srd(a, 48, 26, 1605632)
    a("s_sub_u32 s54, s2, 112", "s_mul_i32 s55, s54, 4682", "s_lshr_b32 s55, s55, 16", "s_mul_i32 s10, s55, 14", "s_sub_u32 s10, s54, s10",
      "s_mov_b32 s5, 896", "s_lshl_b32 s6, s10, 6", "s_mov_b32 s65, 4",
      "s_lshl_b32 s62, s55, 4", "s_lshl_b32 s10, s4, 2", "s_add_u32 s62, s62, s10",
      "s_lshl_b32 s64, s54, 14", "s_lshl_b32 s10, s4, 12", "s_add_u32 s64, s64, s10", f"s_add_u32 s64, s64, {W2F}",
      "s_mov_b32 s52, 512", "s_mov_b32 s53, 256", "s_branch K1_JC")
    a.label("K1_J2")
    srd(a, 48, 20, 401408)
    a("s_sub_u32 s54, s2, 210", "s_cmp_ge_u32 s2, 238", "s_cselect_b32 s54, 0, s54", "s_cselect_b32 s69, 0, -1",
      "s_and_b32 s55, s54, 1", "s_lshr_b32 s54, s54, 1", "s_mov_b32 s5, 896", "s_lshl_b32 s6, s54, 6", "s_sub_u32 s65, 4, s55",
      "s_mul_i32 s62, s4, s65", "s_lshl_b32 s10, s55, 4", "s_add_u32 s62, s62, s10",
      "s_mul_i32 s64, s54, 28", "s_add_u32 s64, s64, s62", "s_lshl_b32 s64, s64, 10", f"s_add_u32 s64, s64, {WOF}",
      "s_and_b32 s65, s65, s69")
    a.label("K1_JC")
    a("s_lshl_b32 s63, s5, 4", "s_mul_i32 s62, s62, s63", "s_add_u32 s62, s62, s6",
      "v_lshrrev_b32 v3, 2, v1", "v_mul_lo_u32 v3, v3, s5", "v_and_b32 v2, 3, v1", "v_lshlrev_b32 v2, 4, v2", f"v_add_u32 v{VTD}, v3, v2",
      "v_lshrrev_b32 v2, 5, v1", "v_mul_lo_u32 v2, v2, s53",
      "v_bfe_u32 v3, v1, 2, 2", "v_lshlrev_b32 v3, 6, v3", "v_add_u32 v2, v2, v3",
      "v_bfe_u32 v3, v1, 4, 1", "v_lshlrev_b32 v3, 5, v3", "v_add_u32 v2, v2, v3",
      "v_and_b32 v3, 3, v1", "v_lshlrev_b32 v3, 3, v3", "v_add_u32 v2, v2, v3",
      f"v_add_u32 v{VTA}, s9, v2", f"v_add_u32 v{VTB}, s52, v{VTA}",
      f"v_lshlrev_b32 v{VL16}, 4, v1", f"v_add_u32 v{VEX}, {EXB}, v{VL16}",
      "s_lshl_b32 s68, s2, 2", "s_add_u32 s68, s68, s4", "s_lshl_b32 s68, s68, 11", f"s_add_u32 s68, s68, {OF}")
    a("s_cmp_ge_u32 s3, 11", "s_cbranch_scc1 K1_NNN", "s_cmp_eq_u32 s3, 10", "s_cbranch_scc1 K1_TTN")
    body(a, vm, pend, "TTT", "a")
    a.label("K1_TTN")
    body(a, vm, pend, "TTN", "b")
    a.label("K1_NNN")
    body(a, vm, pend, "NNN", "c")
    a.label("K1_END")
    a("s_endpgm")
    return a, dict(name="k1_kernel", grid=256, block=256, lds=LDS, vgpr=212, agpr=0)
```

```python
from common import *

Q0, O0, S0, P0, R0 = 16, 48, 112, 144, 160
LH = [0, 32768]
LHID = [0, 16384]
MISC = 61440
FLG = MISC
MXB = MISC + 64
STB = MISC + 2560
LA = 65536
LS = LA + 65536
LDS = LS + 32768
MAP = os.environ.get("MAP", "row")
MODE = dict(O=os.environ.get("MODE_O", "auto"), H=os.environ.get("MODE_H", "auto"), P=os.environ.get("MODE_P", "auto"))
SPIN = 30000
ACC = [16, 32, 48, 64, 144, 160]
WB_, WC_ = 80, 192
G = [144 + 4 * i for i in range(8)] + [184 + 4 * i for i in range(6)]
XRES = 208
HOWN = 176
def WO(bp, i):
    f = bp * 7 + i
    return vr(224 + 4 * f) if f < 8 else ar(232 + 4 * (f - 8))
def W1(t, ks): return ar(4 * (t * 29 + ks))
sG, sJ, sB, sR = 56, 57, 58, 59
sLO, sLG, sDONE, sSPIN = 60, 61, 62, 63
sWO0, sWO1, sW1, sW2 = 64, 65, 66, 67
sH, sPF, sT1, sT2 = 68, 69, 70, 71
sX, sID = 72, 73
SRD2 = "s[52:55]"

def Q(t, s): return vr(Q0 + 8 * t + 4 * s)
def K(j, s): return vr(R0 + 16 * j + 4 * s)
def V(j, s): return vr(R0 + 16 * j + 8 + 4 * s)
def P(b, s): return vr(P0 + 8 * b + 4 * s)

def m4(a, d, A, B):
    a(f"v_mfma_f32_4x4x4_16b_bf16 {vr(d)}, {vr(A,2)}, {vr(B,2)}, {vr(d)}")

def tile_loads(j):
    return [f"buffer_load_dwordx4 {K(j,0)}, v2, s[36:39], s8 offen", f"buffer_load_dwordx4 {K(j,1)}, v2, s[36:39], s8 offen offset:1024",
            f"buffer_load_dwordx4 {V(j,0)}, v3, s[36:39], s8 offen", f"buffer_load_dwordx4 {V(j,1)}, v3, s[36:39], s8 offen offset:1024",
            "s_add_u32 s8, s8, 2048"]


def step(a, j, t, vm=None, J=None, extra=None):
    b = t & 1
    jn, tn = (j, t + 1) if t < 3 else ((j + 1) % 4, 0)
    jp, tp = (j, t - 1) if t > 0 else ((j - 1) % 4, 3)
    Sn = S0 + 16 * (b ^ 1)
    Sc = S0 + 16 * b
    last = J == 15 and t == 3
    def ex(g):
        for r in range(4 * g, 4 * g + 4):
            a(f"v_exp_f32 v{Sc+r}, v{Sc+r}")
        for p in (2 * g, 2 * g + 1):
            a(f"v_cvt_pk_bf16_f32 v{P0+8*b+p}, v{Sc+2*p}, v{Sc+2*p+1}")
    def xt():
        if extra and t != 1:
            tg, g = extra.pop(0)
            vm(tg, *g)
    if t == 3 and not last:
        if vm is None:
            a("s_waitcnt vmcnt(10)")
        else:
            vm.wait(f"k{J+1}")
    if not last:
        mfma(a, Sn, K(jn, 0), Q(tn, 0), "0")
    xt()
    ex(0)
    if not last:
        mfma(a, Sn, K(jn, 1), Q(tn, 1))
    ex(1)
    if t == 1:
        if vm is None:
            a("s_waitcnt vmcnt(8)")
        else:
            vm.wait(f"v{J}")
    mfma(a, O0 + 16 * tp, V(jp, 0), P(b ^ 1, 0))
    xt()
    ex(2)
    mfma(a, O0 + 16 * tp, V(jp, 1), P(b ^ 1, 1))
    if t == 1:
        L = tile_loads((j + 3) % 4)
        if vm is None:
            a(*L)
        elif J + 3 < 16:
            vm(f"k{J+3}", *L[:2])
            vm(f"v{J+3}", *L[2:])
    ex(3)


def attn_start(a, vm=None):
    a("s_mov_b32 s8, s11")
    for j in range(3):
        L = tile_loads(j)
        if vm is None:
            a(*L)
        else:
            vm(f"k{j}", *L[:2])
            vm(f"v{j}", *L[2:])


def attn_start2(a, vm=None):
    for r in list(range(O0, O0 + 64)) + list(range(P0 + 8, P0 + 16)) + list(range(R0 + 56, R0 + 64)):
        a(f"v_mov_b32 v{r}, 0")
    if vm is None:
        a("s_mov_b32 s13, 4", "s_waitcnt vmcnt(10)")
    else:
        vm.wait("k0")
    mfma(a, S0, K(0, 0), Q(0, 0), "0")
    mfma(a, S0, K(0, 1), Q(0, 1))
    a("s_nop 7", "s_nop 3")


_lab = [0]
def stores(a, which, sflag, ins):
    if MODE[which] == "sc1":
        a(*[i + " sc1" if i.startswith("buffer_store") else i for i in ins])
        return
    _lab[0] += 1
    n = _lab[0]
    a(f"s_cmp_eq_u32 s{sflag}, 0", f"s_cbranch_scc1 P_SA{n}")
    a(*ins)
    a(f"s_branch P_SB{n}")
    a.label(f"P_SA{n}")
    a(*[i + " sc1" if i.startswith("buffer_store") else i for i in ins])
    a.label(f"P_SB{n}")


def poll(a, name, items, waits, between=()):
    for it in items:
        a(*it["loads"])
    a(f"s_mov_b32 s{sDONE}, 0", f"s_mov_b32 s{sSPIN}, {SPIN}")
    for f in between:
        f(a)
    a.label(f"{name}_L")
    for i, it in enumerate(items):
        a(f"s_bitcmp1_b32 s{sDONE}, {i}", f"s_cbranch_scc1 {name}_S{i}", f"s_waitcnt vmcnt({waits[i]})")
        rs = [b + k for b in it["regs"] for k in range(4)]
        a(f"v_max3_u32 v4, v{rs[0]}, v{rs[1]}, v{rs[2]}")
        k = 3
        while k < len(rs):
            if k + 1 < len(rs):
                a(f"v_max3_u32 v4, v4, v{rs[k]}, v{rs[k+1]}")
                k += 2
            else:
                a(f"v_max_u32 v4, v4, v{rs[k]}")
                k += 1
        a("v_cmp_eq_u32 vcc, -1, v4", "s_nop 1", f"s_cbranch_vccnz {name}_R{i}")
        it["proc"](a)
        a(f"s_bitset1_b32 s{sDONE}, {i}", f"s_branch {name}_S{i}")
        a.label(f"{name}_R{i}")
        a(*it["loads"])
        a.label(f"{name}_S{i}")
    a(f"s_cmp_eq_u32 s{sDONE}, {(1 << len(items)) - 1}", f"s_cbranch_scc1 {name}_O",
      "s_waitcnt vmcnt(0)", f"s_sub_u32 s{sSPIN}, s{sSPIN}, 1", f"s_cmp_eq_u32 s{sSPIN}, 0", "s_cbranch_scc1 P_END", f"s_branch {name}_L")
    a.label(f"{name}_O")


def table_eval(a):
    a(f"v_xor_b32 v12, s{sID}, v12", f"v_xor_b32 v13, s{sID}, v13", f"v_xor_b32 v14, s{sID}, v14", f"v_xor_b32 v15, s{sID}, v15",
      "v_or3_b32 v12, v12, v13, v14", "v_or_b32 v12, v12, v15", "s_nop 0", "v_readfirstlane_b32 s10, v12",
      "s_cmp_eq_u32 s10, 0", f"s_cselect_b32 s{sLO}, 1, 0")
    table_eval_g(a)


def table_eval_g(a):
    a(f"v_xor_b32 v10, s{sID}, v10", f"v_xor_b32 v11, s{sID}, v11", "v_and_b32 v11, 0xffffff, v11", "v_or_b32 v10, v10, v11", "s_nop 0",
      "v_readfirstlane_b32 s10, v10", "s_cmp_eq_u32 s10, 0", f"s_cselect_b32 s{sLG}, 1, 0", f"s_and_b32 s{sT2}, s10, 0xf0f0f0f0")


def gen_P():
    a = Asm()
    vm = VM(a)
    prologue(a, 256, "P_END")
    a("s_and_b32 s5, s2, 7", "s_lshr_b32 s6, s2, 3")
    if MAP == "row":
        a("s_lshl_b32 s3, s5, 1", "s_lshr_b32 s10, s6, 4", "s_add_u32 s3, s3, s10", "s_and_b32 s7, s6, 15")
    else:
        a("s_lshl_b32 s7, s5, 1", "s_lshr_b32 s10, s6, 4", "s_add_u32 s7, s7, s10", "s_and_b32 s3, s6, 15")
    a("v_lshlrev_b32 v2, 4, v1", f"v_add_u32 v3, {VF-KF}, v2",
      "s_lshl_b32 s9, s7, 17",
      "s_lshl_b32 s11, s4, 15", "s_add_u32 s11, s11, s9", f"s_add_u32 s11, s11, {KF}",
      "s_mov_b32 s12, 0")
    prologue2(a)
    for t in range(4):
        a(f"s_add_u32 s10, s4, {t}", "s_and_b32 s10, s10, 3", "s_lshl_b32 s13, s3, 2", "s_add_u32 s10, s10, s13", "s_lshl_b32 s10, s10, 11",
          "s_add_u32 s10, s10, s9")
        vm("q", f"buffer_load_dwordx4 {Q(t,0)}, v2, s[36:39], s10 offen", f"buffer_load_dwordx4 {Q(t,1)}, v2, s[36:39], s10 offen offset:1024")
    attn_start(a, vm)
    a(f"s_lshl_b32 s{sG}, s5, 2", "s_lshr_b32 s10, s6, 3", f"s_add_u32 s{sG}, s{sG}, s10", f"s_and_b32 s{sJ}, s6, 7",
      f"s_and_b32 s{sB}, s4, 1", f"s_lshr_b32 s{sR}, s4, 1",
      "s_mov_b32 s52, s32", "s_mov_b32 s53, s33", f"s_cmp_lt_u32 s{sJ}, 7", "s_cselect_b32 s54, 0x10000000, 0", "s_mov_b32 s55, 0x20000")
    srd(a, 40, 16, 1835008)
    srd(a, 44, 30, 256)
    srd(a, 48, 28, 1835008)
    for l in range(2):
        a(f"s_xor_b32 s10, s{sB}, {l}", f"s_lshl_b32 s13, s{sJ}, 1", "s_add_u32 s10, s10, s13", "s_mul_i32 s10, s10, 28", "s_mul_i32 s13, s4, 7",
          "s_add_u32 s10, s10, s13", "s_lshl_b32 s10, s10, 10", f"s_add_u32 s{sWO0+l}, s10, {WOF}")
    a(f"s_lshl_b32 s10, s{sJ}, 3", "s_lshl_b32 s13, s4, 1", "s_add_u32 s10, s10, s13", f"s_mul_i32 s10, s10, {W1T}", f"s_add_u32 s{sW1}, s10, {W1F}",
      f"s_mul_i32 s10, s{sJ}, 14", "s_mul_i32 s13, s4, 3", "s_add_u32 s10, s10, s13", "s_lshl_b32 s10, s10, 14", f"s_add_u32 s{sW2}, s10, {W2F}",
      f"s_lshl_b32 s10, s{sG}, 1", f"s_add_u32 s10, s10, s{sR}", f"s_mul_i32 s{sX}, s10, 28672", f"s_lshl_b32 s13, s{sJ}, 1", f"s_add_u32 s13, s13, s{sB}",
      "s_lshl_b32 s10, s13, 11", f"s_add_u32 s{sH}, s{sX}, s10", f"s_add_u32 s{sH}, s{sH}, {H2F}",
      "s_lshl_b32 s10, s13, 6", f"s_add_u32 s{sX}, s{sX}, s10",
      f"s_mul_i32 s10, s{sG}, 28", "s_mul_i32 s13, s4, 6", "s_add_u32 s10, s10, s13", "s_mul_i32 s10, s10, 7", f"s_add_u32 s10, s10, s{sJ}",
      "s_lshl_b32 s10, s10, 11", f"s_add_u32 s{sPF}, s10, {PF}",
      f"s_mul_i32 s10, s{sG}, 28", f"s_lshl_b32 s13, s{sB}, 1", "s_add_u32 s10, s10, s13", f"s_add_u32 s10, s10, s{sR}", "s_add_u32 s10, s10, 24",
      "s_mul_i32 s10, s10, 7", f"s_add_u32 s10, s10, s{sJ}", "s_lshl_b32 s10, s10, 11", f"s_add_u32 s{sT1}, s10, {PF}",
      "s_getreg_b32 s13, hwreg(HW_REG_XCC_ID, 0, 4)", "s_and_b32 s13, s13, 7",
      f"s_mul_i32 s{sID}, s13, 0x01010101", f"s_or_b32 s{sID}, s{sID}, 0xf0f0f0f0",
      "s_lshl_b32 s10, 16, s4", "s_or_b32 s13, s13, s10", "s_and_b32 s10, s6, 3", "s_lshl_b32 s10, s10, 3", "s_lshl_b32 s13, s13, s10",
      "v_mov_b32 v8, s13", "s_lshl_b32 s10, s5, 5", "s_add_u32 s10, s10, s6", "s_and_b32 s10, s10, 0xfc",
      "v_lshlrev_b32 v9, 12, v1", "v_add_u32 v9, s10, v9", "v_mov_b32 v0, 0")
    for r in range(4, 8):
        a(f"v_mov_b32 v{r}, -1")
    ex = []
    fl = [(sH, 0), (sH, 1024)] + [(sT1, 0), (sT1, 1024)]
    for s_, o in fl:
        ex.append(("f", [f"buffer_store_dwordx4 v[4:7], v2, {SRD2}, s{s_} offen offset:{o} sc1"]))
    for u in range(6):
        ex.append(("f", [f"s_add_u32 s10, s{sPF}, {u*14336}", f"buffer_store_dwordx4 v[4:7], v2, {SRD2}, s10 offen sc1"]))
        ex.append(("f", [f"buffer_store_dwordx4 v[4:7], v2, {SRD2}, s10 offen offset:1024 sc1"]))
    wl = []
    for bp in range(2):
        for i in range(7):
            pre = [f"s_add_u32 s14, s{sWO0+bp}, {i*1024}"] if i % 4 == 0 else []
            wl.append(("w", pre + [f"buffer_load_dwordx4 {WO(bp,i)}, v2, {SRD2}, s14 offen offset:{(i%4)*1024}"]))
    for f in range(58):
        pre = [f"s_add_u32 s14, s{sW1}, {f*1024}"] if f % 4 == 0 else []
        wl.append(("w", pre + [f"buffer_load_dwordx4 {ar(4*f)}, v2, {SRD2}, s14 offen offset:{(f%4)*1024}"]))
    NPUB, NTAB = 24, 58
    ex += wl[:NPUB]
    ex.append(("PUB", None))
    ex += wl[NPUB:NTAB]
    ex.append(("t", [f"s_lshl_b32 s10, s3, 4", "buffer_load_dwordx4 v[12:15], v0, s[44:47], s10 offen sc1"]))
    ex.append(("t", [f"s_lshl_b32 s10, s{sG}, 3", "buffer_load_dwordx2 v[10:11], v0, s[44:47], s10 offen sc1"]))
    ex += wl[NTAB:]
    exl = ex
    attn_start2(a, vm)
    stamp(a, 1)
    class Ex(list):
        def pop(self, i=0):
            tg, g = list.pop(self, 0)
            if tg == "PUB":
                n = vm.cnt("f")
                return ("pub", [f"s_waitcnt vmcnt({n})", "buffer_atomic_or v8, v9, s[44:47], 0 offen sc1"])
            return tg, g
    exl = Ex(exl)
    for J in range(16):
        for t in range(4):
            step(a, J % 4, t, vm, J, exl)
    assert not exl, len(exl)
    stamp(a, 2)
    mfma(a, O0 + 48, V(3, 0), P(1, 0))
    mfma(a, O0 + 48, V(3, 1), P(1, 1))
    vm.wait("t")
    table_eval(a)
    a("s_branch P_EPI2")
    a.label("P_EPI")
    mfma(a, O0 + 48, V(3, 0), P(1, 0))
    mfma(a, O0 + 48, V(3, 1), P(1, 1))
    a.label("P_EPI2")
    for t in range(1, 4):
        a(f"s_add_u32 s10, s4, {t}", "s_and_b32 s10, s10, 3", "s_mul_i32 s10, s10, 12288", f"s_add_u32 s10, s10, {(t-1)*4096}",
          f"v_add_u32 v{3+t}, s10, v2")
    a("s_mul_i32 s10, s4, 12288", "v_add_u32 v7, s10, v2")
    for t in (1, 2):
        for q in range(4):
            a(f"ds_write_b128 v{3+t}, {vr(O0+16*t+4*q)} offset:{q*1024}")
    F = S0
    a(f"v_pk_add_f32 v[{F}:{F+1}], v[{O0}:{O0+1}], v[{O0+2}:{O0+3}]", f"v_pk_add_f32 v[{F+2}:{F+3}], v[{O0+4}:{O0+5}], v[{O0+6}:{O0+7}]")
    for r in range(O0 + 8, O0 + 48, 4):
        a(f"v_pk_add_f32 v[{F}:{F+1}], v[{F}:{F+1}], v[{r}:{r+1}]", f"v_pk_add_f32 v[{F+2}:{F+3}], v[{F+2}:{F+3}], v[{r+2}:{r+3}]")
    for q in range(4):
        a(f"ds_write_b128 v6, {vr(O0+48+4*q)} offset:{q*1024}")
    for r in range(O0 + 48, O0 + 64, 4):
        a(f"v_pk_add_f32 v[{F}:{F+1}], v[{F}:{F+1}], v[{r}:{r+1}]", f"v_pk_add_f32 v[{F+2}:{F+3}], v[{F+2}:{F+3}], v[{r+2}:{r+3}]")
    a(f"v_pk_add_f32 v[{F}:{F+1}], v[{F}:{F+1}], v[{F+2}:{F+3}]", f"v_add_f32 v{F}, v{F}, v{F+1}",
      f"v_min3_f32 v{F+4}, v{O0+12}, v{O0+28}, v{O0+44}", f"v_min_f32 v{F+4}, v{F+4}, v{O0+60}",
      f"v_max3_f32 v{F+5}, v{O0+12}, v{O0+28}, v{O0+44}", f"v_max_f32 v{F+5}, v{F+5}, v{O0+60}",
      "s_movk_i32 s10, 0x207", f"v_cmp_class_f32 s[14:15], v{F}, s10",
      f"s_mov_b32 s10, {f2u(2.0**-60)}", f"v_cmp_nlt_f32 s[74:75], s10, v{F+4}",
      f"s_mov_b32 s10, {f2u(2.0**60)}", f"v_cmp_ngt_f32 vcc, s10, v{F+5}",
      "s_or_b32 s14, s14, s15", "s_or_b32 s75, s75, vcc_hi", "s_or_b32 s14, s14, s75",
      f"v_mov_b32 v{F+6}, s14", "s_lshl_b32 s10, s4, 2", f"s_add_u32 s10, s10, {FLG}", f"v_mov_b32 v{F+7}, s10",
      f"ds_write_b32 v{F+7}, v{F+6}", f"v_mov_b32 v{F+7}, {FLG}",
      "s_waitcnt lgkmcnt(0)", "s_barrier",
      f"ds_read_b128 {vr(F+8)}, v{F+7}")
    RD = R0
    for i in range(12):
        a(f"ds_read_b128 {vr(RD+4*i)}, v7 offset:{i*1024}")
    a("s_waitcnt lgkmcnt(12)", f"v_or_b32 v{F+8}, v{F+8}, v{F+9}", f"v_or3_b32 v{F+8}, v{F+8}, v{F+10}, v{F+11}", "s_nop 0",
      f"v_readfirstlane_b32 s10, v{F+8}", "s_cmp_eq_u32 s10, 0", "s_cbranch_scc1 P_FIN", "s_cmp_eq_u32 s12, 0", "s_cbranch_scc1 P_SCAN")
    a.label("P_FIN")
    a("s_mul_i32 s10, s7, 7", "v_lshrrev_b32 v4, 5, v1", "v_add_u32 v4, s10, v4", "v_lshrrev_b32 v5, 1, v4", "v_lshlrev_b32 v5, 9, v5",
      "v_and_b32 v4, 1, v4", "v_lshlrev_b32 v4, 3, v4", "v_add_u32 v4, v4, v5", "v_and_b32 v5, 31, v1", "v_lshlrev_b32 v6, 4, v5",
      "v_add_u32 v4, v4, v6",
      "s_lshl_b32 s10, s3, 2", "s_add_u32 s10, s10, s4", "s_mul_i32 s10, s10, 28672", f"s_add_u32 s10, s10, {OF}")
    for i in range(3):
        a(f"s_waitcnt lgkmcnt({8-4*i})")
        for p in range(8):
            a(f"v_pk_add_f32 v[{O0+2*p}:{O0+2*p+1}], v[{O0+2*p}:{O0+2*p+1}], v[{RD+16*i+2*p}:{RD+16*i+2*p+1}]")
    a(f"v_mov_b32 v8, v{O0+12}", f"v_mov_b32 v9, v{O0+12}", "v_permlane32_swap_b32 v8, v9", "v_rcp_f32 v8, v9", "v_rcp_f32 v9, v9")
    for p in range(7):
        a(f"v_pk_mul_f32 v[{O0+2*p}:{O0+2*p+1}], v[{O0+2*p}:{O0+2*p+1}], v[8:9]")
    a(f"v_pk_mul_f32 v[{O0+14}:{O0+15}], v[{O0+14}:{O0+15}], v[8:9]")
    PK = S0 + 16
    for p in range(8):
        a(f"v_cvt_pk_bf16_f32 v{PK+p}, v{O0+2*p}, v{O0+2*p+1}")
    for p in range(8):
        a(f"v_min_u32 v{PK+p}, -2, v{PK+p}")
    st = []
    for rq in range(4):
        if rq == 3:
            st.append("s_mov_b32 exec_hi, 0")
        st.append(f"buffer_store_dwordx2 v[{PK+2*rq}:{PK+2*rq+1}], v4, s[36:39], s10 offen offset:{rq*512}")
    st.append("s_mov_b32 exec_hi, -1")
    stores(a, "O", sLO, st)
    stamp(a, 3)
    a(f"s_cmp_eq_u32 s{sJ}, 7", "s_cbranch_scc1 P_DONE")
    a(f"s_cmp_eq_u32 s{sT2}, 0", "s_cbranch_scc1 P_GOK", f"s_mov_b32 s{sSPIN}, {SPIN*4}")
    a.label("P_GW")
    a(f"s_lshl_b32 s10, s{sG}, 3", "buffer_load_dwordx2 v[10:11], v0, s[44:47], s10 offen sc1", "s_waitcnt vmcnt(0)")
    table_eval_g(a)
    a(f"s_sub_u32 s{sSPIN}, s{sSPIN}, 1", f"s_cmp_eq_u32 s{sSPIN}, 0", "s_cbranch_scc1 P_END", f"s_cmp_eq_u32 s{sT2}, 0", "s_cbranch_scc0 P_GW")
    a.label("P_GOK")
    a("v_mul_u32_u24 v6, 896, v5", "v_lshrrev_b32 v7, 5, v1", "v_lshlrev_b32 v7, 3, v7", "v_add_u32 v6, v6, v7")
    for rq in range(4):
        a(f"buffer_load_dwordx2 v[{XRES+2*rq}:{XRES+2*rq+1}], v6, s[40:43], s{sX} offen offset:{rq*16}")
    for l in range(2):
        a(f"s_xor_b32 s10, s{sR}, {l}", f"s_lshl_b32 s13, s{sG}, 1", "s_add_u32 s10, s10, s13", "s_mul_i32 s10, s10, 28", "s_mul_i32 s13, s4, 7",
          "s_add_u32 s10, s10, s13", "s_lshl_b32 s10, s10, 10", f"s_add_u32 s{14+l}, s10, {OF}", f"s_add_u32 s{74+l}, s{14+l}, 4096")
    a(f"s_add_u32 s8, s{sW2}, 16384")
    items = []
    n = 0
    for i in range(7):
        for rp in range(2):
            g = G[n]
            def proc(a, i=i, rp=rp, g=g, n=n):
                for bp in range(2):
                    mfma(a, ACC[bp + 2 * rp], WO(bp, i), vr(g))
                a(f"s_add_u32 s10, s8, {(n>>2)*4096}", f"buffer_load_dwordx4 {vr(WB_+4*n)}, v2, s[36:39], s10 offen offset:{(n&3)*1024}")
            items.append(dict(loads=[f"buffer_load_dwordx4 {vr(g)}, v2, s[36:39], s{(14 if i < 4 else 74)+rp} offen offset:{(i&3)*1024} sc1"], regs=[g], proc=proc))
            n += 1
    def zero_acc(a):
        for r in range(16, 80):
            a(f"v_mov_b32 v{r}, 0")
        for t in range(1, 4):
            a(f"s_xor_b32 s10, s4, {t}", "s_mul_i32 s10, s10, 12288", f"s_add_u32 s10, s10, {(t-1)*4096}", f"v_add_u32 v{8+t}, s10, v2")
        a("s_mul_i32 s10, s4, 12288", "v_add_u32 v8, s10, v2", "s_barrier")
    poll(a, "PO", items, [13] * 14, [zero_acc])
    a("s_nop 7")
    stamp(a, 4)
    for t in range(1, 4):
        for q in range(4):
            a(f"ds_write_b128 v{8+t}, {vr(ACC[t]+4*q)} offset:{q*1024}")
    a("s_waitcnt lgkmcnt(0)", "s_barrier")
    RDL = G[:12]
    for i in range(12):
        a(f"ds_read_b128 {vr(RDL[i])}, v8 offset:{i*1024}")
    XR = 32
    for p in range(8):
        a(f"v_lshlrev_b32 v{XR+2*p}, 16, v{XRES+p}", f"v_and_b32 v{XR+2*p+1}, 0xffff0000, v{XRES+p}")
    A0 = ACC[0]
    for p in range(8):
        a(f"v_pk_add_f32 v[{A0+2*p}:{A0+2*p+1}], v[{A0+2*p}:{A0+2*p+1}], v[{XR+2*p}:{XR+2*p+1}]")
    for i in range(3):
        a(f"s_waitcnt lgkmcnt({8-4*i})")
        for p in range(8):
            r = RDL[4 * i + (p >> 1)] + 2 * (p & 1)
            a(f"v_pk_add_f32 v[{A0+2*p}:{A0+2*p+1}], v[{A0+2*p}:{A0+2*p+1}], v[{r}:{r+1}]")
    for p in range(8):
        a(f"v_cvt_pk_bf16_f32 v{HOWN+p}, v{A0+2*p}, v{A0+2*p+1}")
    for p in range(8):
        a(f"v_min_u32 v{XR+p}, -2, v{HOWN+p}")
    for q in range(2):
        a(f"v_permlane32_swap_b32 v{XR+4*q}, v{XR+4*q+2}", f"v_permlane32_swap_b32 v{XR+4*q+1}, v{XR+4*q+3}")
    stores(a, "H", sLG, [f"buffer_store_dwordx4 {vr(XR+4*q)}, v2, s[36:39], s{sH} offen offset:{q*1024}" for q in range(2)])
    stamp(a, 5)
    SUMR, SSQR, VONE = 8, 12, 6
    a(f"s_mul_i32 s14, s{sG}, 57344", "s_mul_i32 s10, s4, 14336", "s_add_u32 s14, s14, s10", f"s_add_u32 s14, s14, {H2F}",
      "s_add_u32 s15, s14, 4096", "s_add_u32 s74, s14, 8192", "s_add_u32 s75, s14, 12288")
    items = []
    for i in range(14):
        g = G[i]
        def proc(a, i=i, g=g):
            a(f"ds_write_b128 v5, {vr(g)} offset:{i*1024}", f"s_add_u32 m0, s9, {i*1024}", f"s_add_u32 s10, s{sW2}, {i*1024}")
            m4(a, SUMR, VONE, g)
            m4(a, SSQR, g, g)
            a("buffer_load_dwordx4 v2, s[36:39], s10 offen lds")
            m4(a, SUMR, VONE, g + 2)
            m4(a, SSQR, g + 2, g + 2)
        items.append(dict(loads=[f"buffer_load_dwordx4 {vr(g)}, v2, s[36:39], s{[14,15,74,75][i>>2]} offen offset:{(i&3)*1024} sc1"], regs=[g], proc=proc))
    def pre_h(a):
        for r in range(8, 16):
            a(f"v_mov_b32 v{r}, 0")
        a(f"v_mov_b32 v{VONE}, {ONES2}", f"v_mov_b32 v{VONE+1}, {ONES2}",
          f"s_lshl_b32 s10, s{sR}, 15", f"s_mul_i32 s13, s{sB}, 14336", "s_add_u32 s10, s10, s13", "v_add_u32 v5, s10, v2",
          "s_lshl_b32 s9, s4, 14", f"s_add_u32 s9, s9, {LA}", "s_barrier")
    poll(a, "PH", items, [13] * 14, [pre_h])
    stamp(a, 6)
    vm = VM(a)
    vm.seq = ["a"] * 40
    a("s_mov_b32 s10, 0xaaaaaaaa", "s_mov_b32 s11, 0xaaaaaaaa", "s_mov_b32 s14, 0xcccccccc", "s_mov_b32 s15, 0xcccccccc",
      "v_and_b32 v4, 31, v1", "v_lshlrev_b32 v4, 4, v4", f"s_lshl_b32 s13, s{sR}, 9", f"s_lshl_b32 s8, s{sB}, 3", "s_add_u32 s13, s13, s8",
      "v_add_u32 v5, s13, v4",
      f"v_cndmask_b32 v{SSQR}, v{SSQR}, v{SSQR+1}, s[10:11]", f"v_cndmask_b32 v{SSQR+2}, v{SSQR+2}, v{SSQR+3}, s[10:11]",
      f"v_cndmask_b32 v{SUMR+1}, v{SSQR}, v{SSQR+2}, s[14:15]")
    half_sum(a, SUMR, 10)
    half_sum(a, SUMR + 1, 11)
    a(f"ds_write_b64 v5, v[{SUMR}:{SUMR+1}] offset:{STB}", "s_waitcnt lgkmcnt(0)", "s_barrier")
    HR = [232 + 4 * i for i in range(4)]
    lg = []
    def lds(tag, ins):
        a(ins)
        lg.append(tag)
    def lwait(tag, also=""):
        last = max(i for i, t in enumerate(lg) if t == tag)
        n = len(lg) - 1 - last
        assert n <= 15
        a(f"s_waitcnt lgkmcnt({n}){also}")
    def hread(n):
        rho, ks = divmod(n, 28)
        lds(f"h{n}", f"ds_read_b128 {ar(HR[n % 4])}, v2 offset:{LH[rho] + ks*1024}")
    STv = 144
    EM = [152, 156]
    hread(0); hread(1); hread(2)
    lds("st", f"ds_read_b128 {vr(STv)}, v4 offset:{STB}")
    lds("st", f"ds_read_b128 {vr(STv+4)}, v4 offset:{STB+512}")
    fa = []
    for rho in range(2):
        s_ = STv + 4 * rho
        fa += [f"v_add_f32 v{s_}, v{s_}, v{s_+2}", f"v_add_f32 v{s_+1}, v{s_+1}, v{s_+3}",
               f"v_mul_f32 v{s_}, s13, v{s_}", f"v_mul_f32 v{s_+1}, s13, v{s_+1}",
               f"v_fma_f32 v{s_+1}, -v{s_}, v{s_}, v{s_+1}", f"v_max_f32 v{s_+1}, 0, v{s_+1}", f"v_add_f32 v{s_+1}, {f2u(1e-5)}, v{s_+1}",
               f"v_rsq_f32 v{s_+1}, v{s_+1}", f"v_sub_f32 v{s_}, 0, v{s_}"]
        tmp = Asm()
        ext_m(tmp, EM[rho], s_, 160, 15)
        fa += [i.text for i in tmp.ins]
    fa += [f"s_cmp_eq_u32 s{sR}, 0", "s_cselect_b64 s[10:11], -1, 0", "s_nop 0", f"v_cndmask_b32 v3, v{STv+5}, v{STv+1}, s[10:11]"]
    a(f"s_mov_b32 s13, {f2u(1.0/448)}", "s_mov_b32 s15, 0x07060302")
    bl = []
    for i in (14, 15):
        bl.append(("a", [f"s_add_u32 m0, s9, {i*1024}", f"s_add_u32 s8, s{sW2}, {i*1024}", "buffer_load_dwordx4 v2, s[36:39], s8 offen lds"]))
    for i in (14, 15):
        bl.append(("b", [f"s_add_u32 s8, s{sW2}, {16384 + i*1024}", f"buffer_load_dwordx4 {vr(WB_+4*i)}, v2, s[36:39], s8 offen"]))
    for i in range(16):
        pre = [f"s_add_u32 s8, s{sW2}, {32768 + i*1024}"] if i % 4 == 0 else []
        bl.append((f"c{i}", pre + [f"buffer_load_dwordx4 {vr(WC_+4*i)}, v2, s[36:39], s8 offen offset:{(i%4)*1024}"]))
    spre = [f"s_mul_i32 s74, s{sJ}, 14", f"s_add_u32 s74, s74, s{sB}", "s_add_u32 s74, s74, 12", "s_lshl_b32 s74, s74, 14", f"s_lshl_b32 s75, s{sR}, 13",
            "s_add_u32 s74, s74, s75", f"s_add_u32 s74, s74, {W2F}", f"s_lshl_b32 s14, s{sB}, 14", "s_add_u32 s75, s75, s14", f"s_add_u32 s75, s75, {LS}"]
    for i in range(8):
        bl.append(("s", (spre if i == 0 else []) + [f"s_add_u32 m0, s75, {i*1024}", f"s_add_u32 s8, s74, {i*1024}", "buffer_load_dwordx4 v2, s[36:39], s8 offen lds"]))

    def relu_epi(acc, rho, t):
        out = []
        for p in range(8):
            out.append(f"v_cvt_pk_bf16_f32 v{acc+p}, v{acc+2*p}, v{acc+2*p+1}")
            if p >= 1:
                out.append(f"v_pk_max_i16 v{acc+p-1}, v{acc+p-1}, 0")
            if p == 4:
                out.append(("W", f"ds_write_b128 v5, {vr(acc)} offset:{LHID[rho] + t*2048}"))
        out.append(f"v_pk_max_i16 v{acc+7}, v{acc+7}, 0")
        out.append(("W", f"ds_write_b128 v5, {vr(acc+4)} offset:{LHID[rho] + t*2048 + 1024}"))
        return out
    def emit_fill(lst, n):
        for _ in range(n):
            if lst:
                x = lst.pop(0)
                if x is None:
                    break
                if isinstance(x, tuple):
                    if x[0] == "L":
                        lwait("st")
                    elif x[0] == "W":
                        lds("w", x[1])
                    elif x[0] == "BAR":
                        lwait("w")
                        a("s_barrier")
                    elif x[0] == "BARV":
                        lwait("w", f" vmcnt({vm.cnt(*x[1])})")
                        a("s_barrier")
                    elif x[0] == "ST":
                        stores(a, "P", sLG, x[1])
                        vm.seq += ["p"] * sum(1 for i in x[1] if i.startswith("buffer_"))
                else:
                    a(x)
    R2H = [0 + 4 * i for i in range(4)]
    R2W = [16 + 4 * i for i in range(4)]
    def f2read(ph, ks):
        n = ph * 16 + ks
        if ph < 2:
            lds(f"g{n}", f"ds_read_b128 {ar(R2H[n % 4])}, v2 offset:{LHID[ph] + ks*1024}")
            lds(f"g{n}", f"ds_read_b128 {ar(R2W[n % 4])}, v6 offset:{ks*1024}")
        else:
            lds(f"g{n}", f"ds_read_b128 {ar(R2H[n % 4])}, v7 offset:{ks*1024}")
            lds(f"g{n}", f"ds_read_b128 {ar(R2W[n % 4])}, v8 offset:{ks*1024}")
    for rho in range(2):
        if rho == 0:
            fill = [None] * 4 + [("L",)] + fa
        else:
            fill = ["s_barrier", "s_lshl_b32 s10, s4, 12", "v_add_u32 v5, s10, v2", "v_add_u32 v6, s9, v2",
                    f"s_lshl_b32 s10, s{sR}, 14", "v_add_u32 v7, s10, v2", f"s_lshl_b32 s10, s{sB}, 14", f"s_add_u32 s10, s10, {LS}", "v_add_u32 v8, s10, v2"] \
                + relu_epi(ACC[0], 0, 0) + relu_epi(ACC[1], 0, 1) + [None] * 4 + [("BARV", ("a",))]
        for ks in range(29):
            n = rho * 28 + ks
            if ks < 28:
                lwait(f"h{n}")
            for t in range(2):
                B = ar(HR[n % 4]) if ks < 28 else vr(EM[rho])
                mfma(a, ACC[2 * rho + t], W1(t, ks), B, "0" if ks == 0 else None)
                if t == 0 and ks < 28 and n + 3 < 56:
                    hread(n + 3)
                if t == 1 and bl and (ks % 3 != 2 if rho == 0 else ks % 2 == 0):
                    tg, g = bl.pop(0)
                    vm(tg, *g)
                emit_fill(fill, 2)
            if rho == 1 and ks >= 26:
                f2read(0, ks - 26)
        assert not fill, (rho, fill)
        stamp(a, 7 + rho)
    assert not bl
    def p_epi(acc, base, off):
        out = []
        for p in range(8):
            out.append(f"v_cvt_pk_bf16_f32 v{acc+p}, v{acc+2*p}, v{acc+2*p+1}")
            if p >= 1:
                out.append(f"v_min_u32 v{acc+p-1}, -2, v{acc+p-1}")
        out.append(f"v_min_u32 v{acc+7}, -2, v{acc+7}")
        out.append(f"s_add_u32 s10, s{base}, {off}")
        out.append(("ST", [f"buffer_store_dwordx4 {vr(acc+4*q)}, v2, s[36:39], s10 offen offset:{q*1024}" for q in range(2)]))
        return out
    XA = [ACC[0], ACC[1], ACC[4]]
    YA = [ACC[2], ACC[3], ACC[5]]
    for ph in range(3):
        if ph == 0:
            fill = [None] * 2 + relu_epi(ACC[2], 1, 0) + relu_epi(ACC[3], 1, 1) + [None] * 4 + [("BARV", ("s",))]
            accs = XA
        elif ph == 1:
            fill = [None] * 2 + sum([p_epi(XA[i], sPF, 2 * i * 14336) for i in range(3)], [])
            accs = YA
        else:
            fill = [None] * 1 + sum([p_epi(YA[i], sPF, (2 * i + 1) * 14336) for i in range(3)], [])
            accs = [ACC[0]]
        for ks in range(16):
            n = ph * 16 + ks
            also = ""
            if ph == 0:
                also = f" vmcnt({vm.cnt('b', f'c{ks}')})" if ks == 0 else f" vmcnt({vm.cnt(f'c{ks}')})"
            lwait(f"g{n}", also)
            for i, acc in enumerate(accs):
                W = [ar(R2W[n % 4]), vr(WB_ + 4 * ks), vr(WC_ + 4 * ks)][i]
                mfma(a, acc, W, ar(R2H[n % 4]), "0" if ks == 0 else None)
                if i == 0 and n + 3 < 48:
                    if n + 3 >= 16 and ph == 0:
                        assert not fill
                    f2read((n + 3) // 16, (n + 3) % 16)
                emit_fill(fill, 4 if ph == 2 else 2)
        assert not fill, (ph, fill)
    stamp(a, 9)
    FG = [80 + 4 * i for i in range(14)]
    FA = 32
    HX = 48
    IDN = 6
    emit_fill(p_epi(ACC[0], sT1, 0), 100)
    a(f"s_mul_i32 s10, s{sG}, 28", f"s_lshl_b32 s13, s{sJ}, 2", "s_add_u32 s10, s10, s13", f"s_lshl_b32 s13, s{sB}, 1", "s_add_u32 s10, s10, s13",
      f"s_add_u32 s10, s10, s{sR}", "s_mul_i32 s14, s10, 14336", f"s_add_u32 s14, s14, {PF}",
      "s_add_u32 s15, s14, 4096", "s_add_u32 s74, s14, 8192", "s_add_u32 s75, s14, 12288")
    items = []
    for i in range(7):
        def proc(a, i=i):
            for q in range(4):
                m4(a, FA + 4 * q, IDN, FG[2 * i] + 2 * q)
        items.append(dict(loads=[f"buffer_load_dwordx4 {vr(FG[2*i+q])}, v2, s[36:39], s{[14,15,74,75][(2*i+q)>>2]} offen offset:{((2*i+q)&3)*1024} sc1" for q in range(2)],
                          regs=[FG[2 * i], FG[2 * i + 1]], proc=proc))
    def pre_f(a):
        for r in range(16):
            a(f"v_mov_b32 v{FA+r}, 0")
        for p in range(8):
            a(f"v_lshlrev_b32 v{HX+2*p}, 16, v{HOWN+p}", f"v_and_b32 v{HX+2*p+1}, 0xffff0000, v{HOWN+p}")
        a("v_and_b32 v8, 1, v1", "v_lshlrev_b32 v8, 4, v8", "v_mov_b32 v9, 0x3f80", "v_lshlrev_b32 v8, v8, v9",
          "s_mov_b32 s10, 0xcccccccc", "s_mov_b32 s11, 0xcccccccc", f"v_cndmask_b32 v{IDN}, v8, 0, s[10:11]", f"v_cndmask_b32 v{IDN+1}, 0, v8, s[10:11]",
          "v_and_b32 v5, 31, v1", "v_mul_u32_u24 v5, 896, v5", "v_lshrrev_b32 v8, 5, v1", "v_lshlrev_b32 v8, 4, v8", "v_add_u32 v5, v5, v8")
    poll(a, "PP", items, [2 * (6 - i) for i in range(7)], [pre_f])
    a("s_nop 3")
    stamp(a, 10)
    for r in range(16):
        a(f"v_fma_f32 v{FA+r}, v{FA+r}, v3, v{HX+r}")
    for p in range(8):
        a(f"v_cvt_pk_bf16_f32 v{FA+p}, v{FA+2*p}, v{FA+2*p+1}")
    for q in range(2):
        a(f"v_permlane32_swap_b32 v{FA+4*q}, v{FA+4*q+2}", f"v_permlane32_swap_b32 v{FA+4*q+1}, v{FA+4*q+3}")
    for q in range(2):
        a(f"buffer_store_dwordx4 {vr(FA+4*q)}, v5, s[48:51], s{sX} offen offset:{q*32}")
    a.label("P_DONE")
    finish(a, 1)
    a.label("P_SCAN")
    a("s_waitcnt lgkmcnt(0)", "s_mov_b32 s12, 1", "s_mov_b32 s8, s11", "s_mov_b32 s13, 16")
    MX = 8
    for t in range(4):
        a(f"v_mov_b32 v{MX+t}, 0xff800000")
    a.label("P_SLOOP")
    a(f"buffer_load_dwordx4 {K(0,0)}, v2, s[36:39], s8 offen", f"buffer_load_dwordx4 {K(0,1)}, v2, s[36:39], s8 offen offset:1024",
      "s_add_u32 s8, s8, 2048", "s_waitcnt vmcnt(0)")
    for t in range(4):
        mfma(a, O0 + 16 * t, K(0, 0), Q(t, 0), "0")
        mfma(a, O0 + 16 * t, K(0, 1), Q(t, 1))
    for t in range(4):
        for r in range(0, 16, 2):
            a(f"v_max3_f32 v{MX+t}, v{MX+t}, v{O0+16*t+r}, v{O0+16*t+r+1}")
    a("s_sub_u32 s13, s13, 1", "s_cmp_lg_u32 s13, 0", "s_cbranch_scc1 P_SLOOP")
    a("v_and_b32 v4, 31, v1", "v_lshlrev_b32 v4, 4, v4")
    for t in range(4):
        half_sum(a, MX + t, 12, "v_max_f32")
        a(f"s_add_u32 s10, s4, {t}", "s_and_b32 s10, s10, 3", "s_lshl_b32 s10, s10, 9", f"s_add_u32 s10, s10, {MXB}",
          f"v_add_u32 v{S0+t}, s10, v4", "s_lshl_b32 s10, s4, 2", f"v_add_u32 v5, s10, v{S0+t}", f"ds_write_b32 v5, v{MX+t}")
    a("s_waitcnt lgkmcnt(0)", "s_barrier", "s_mov_b32 s15, 0x07060302")
    for t in range(4):
        a(f"ds_read_b128 {vr(O0+4*t)}, v{S0+t}")
    a("s_waitcnt lgkmcnt(0)")
    for t in range(4):
        r = O0 + 4 * t
        a(f"v_max3_f32 v{r}, v{r}, v{r+1}, v{r+2}", f"v_max_f32 v{r}, v{r}, v{r+3}", f"v_sub_f32 v{r}, 0, v{r}")
        split3(a, r, r + 1, r + 2, r + 3)
        a("s_mov_b32 exec_lo, 0")
        pack_hi(a, Q0 + 8 * t + 6, r + 1, r + 2, 15)
        a(f"v_lshrrev_b32 v{Q0+8*t+7}, 16, v{r+3}", "s_mov_b32 exec_lo, -1")
    a("s_barrier")
    attn_start(a)
    attn_start2(a)
    a.label("P_LOOP")
    for j in range(4):
        for t in range(4):
            step(a, j, t)
    a("s_sub_u32 s13, s13, 1", "s_cmp_lg_u32 s13, 0", "s_cbranch_scc1 P_LOOP", "s_waitcnt vmcnt(0)", "s_branch P_EPI")
    a.label("P_END")
    a("s_endpgm")
    return a, dict(name="kp_kernel", grid=256, block=256, lds=LDS, vgpr=256, agpr=256)
```

```python
import sys, os
sys.path.insert(0, os.path.dirname(__file__))
from common import *
from k1 import gen_K1

def build(gens, path):
    ref = open(f"cdna_kernels/{NAME}.s.ref").read().split("\n")
    head = [l for l in ref if l.startswith(";") and "@launch" not in l and "Override" not in l and "grid=ceil" not in l]
    out = list(head)
    ks = []
    for g in gens:
        a, m = g()
        a.fix()
        bad = a.verify_branches()
        for b in bad:
            print("HAZARD", m["name"], b)
        ks.append((a, m))
    for a, m in ks:
        out.append(f"; @launch kernel={m['name']} grid=({m['grid']},1,1) block=({m['block']},1,1) lds={m['lds']}")
    out.append('.amdgcn_target "amdgcn-amd-amdhsa--gfx950"')
    out.append(".text")
    for a, m in ks:
        n = m["name"]
        out += [f".globl {n}", ".p2align 8", f".type {n},@function", f"{n}:", a.text()]
    out += ['.section .rodata,"a"']
    for a, m in ks:
        acc = (m["vgpr"] + 3) // 4 * 4
        out += [".p2align 6", f".amdhsa_kernel {m['name']}", f"  .amdhsa_next_free_vgpr {acc + m['agpr']}", "  .amdhsa_next_free_sgpr 102",
                f"  .amdhsa_accum_offset {acc}", "  .amdhsa_group_segment_fixed_size 0", "  .amdhsa_kernarg_size 72",
                "  .amdhsa_user_sgpr_count 2", "  .amdhsa_user_sgpr_kernarg_segment_ptr 1", "  .amdhsa_system_sgpr_workgroup_id_x 1",
                ".end_amdhsa_kernel"]
    open(path, "w").write("\n".join(out) + "\n")

if __name__ == "__main__":
    path = sys.argv[1] if len(sys.argv) > 1 else f"cdna_kernels/{NAME}.s"
    gens = [gen_K1]
    if os.environ.get("ONLY", "") != "k1":
        from kp import gen_P
        gens.append(gen_P)
    build(gens, path)
```
